```python
import torch

def _softmax(x, axis=-1):
    return torch.softmax(x, dim=axis)
def _gelu(x):
    return torch.nn.functional.gelu(x, approximate="tanh")
def _silu(x):
    return torch.nn.functional.silu(x)
def _sigmoid(x):
    return torch.sigmoid(x)
def _layernorm(x, axis=-1, eps=1e-5):
    m = x.mean(dim=axis, keepdim=True)
    v = x.var(dim=axis, keepdim=True, unbiased=False)
    return (x - m) / torch.sqrt(v + eps)
def _scatter_add(tgt, idx, src, axis=0):
    return tgt.clone().index_add_(axis, idx, src)
def _segment_sum(src, seg, n):
    out = torch.zeros((n,) + src.shape[1:], dtype=src.dtype)
    return out.index_add_(0, seg, src)
def _pad(x, pw):
    flat = tuple(v for pair in reversed(pw) for v in pair)
    return torch.nn.functional.pad(x, flat)

kernel_name = 'standalone__standard_2d_1d_3d_conv__vision'

def setup_inputs():

    _w = (lambda a: (lambda t: t.to(torch.bfloat16) if t.is_floating_point() else t)(torch.as_tensor(a)))
    H = W = 384
    C = 384
    K = 1
    return {
        "x": _w((lambda *s: torch.randn(*s, dtype=torch.bfloat16) * 0.05)(1, H, W, C)),
        "w": _w((lambda *s: torch.randn(*s, dtype=torch.bfloat16) * 0.05)(K, K, C, C)),
        "b": _w((lambda *s: torch.randn(*s, dtype=torch.bfloat16) * 0.05)(C)),
    }

def reference(x, w, b):
    B, H, W, Cin = x.shape
    K = w.shape[0]
    pl = (K - 1) // 2
    pr = K // 2
    xp = _pad(x, ((0, 0), (pl, pr), (pl, pr), (0, 0)))
    out = sum(
        torch.einsum('bhwc,cd->bhwd', xp[:, i:i+H, j:j+W, :], w[i, j])
        for i in range(K) for j in range(K)
    )
    return out + b[None, None, None, :]
```

```python
import sys
NAME = "standalone__standard_2d_1d_3d_conv__vision"
def wrap(body, lds=98304, nst=16, grid=256, vg=512):
    o = [f"; @launch grid=({grid},1,1) block=(256,1,1) lds={lds}",
         '.amdgcn_target "amdgcn-amd-amdhsa--gfx950"', ".text", f".globl {NAME}_kernel", ".p2align 8",
         f".type {NAME}_kernel,@function", f"{NAME}_kernel:"]
    o += [f"    s_cmp_ge_u32 s2, {grid}", "    s_cbranch_scc1 L_end",
          "    s_load_dwordx8 s[4:11], s[0:1], 0", "    s_load_dwordx2 s[60:61], s[0:1], 40",
          "    s_memrealtime s[62:63]",
          "    v_lshrrev_b32 v23, 6, v0", "    s_nop 0", "    v_readfirstlane_b32 s28, v23",
          "    s_waitcnt lgkmcnt(0)"]
    for (d, p, n) in ((12, 4, 113246208), (16, 6, 294912), (24, 8, 768), (20, 10, 113246208)):
        o += [f"    s_mov_b32 s{d}, s{p}", f"    s_and_b32 s{d+1}, s{p+1}, 0xffff", f"    s_mov_b32 s{d+2}, {n}", f"    s_mov_b32 s{d+3}, 0x20000"]
    k = [1]
    def st():
        r = f"    s_memrealtime s[{62+2*k[0]}:{63+2*k[0]}]"; k[0] += 1; return r
    o += body(st)
    o += ["    s_waitcnt vmcnt(0)", st(), "    s_waitcnt lgkmcnt(0)", "    s_cmp_lg_u32 s28, 0", "    s_cbranch_scc1 L_end",
          "    s_lshl_b32 s40, s2, 6", "    v_mov_b32 v0, s40"]
    for i in range(16):
        o.append(f"    v_mov_b32 v{2+i}, s{62+2*min(i, k[0]-1)}")
    o.append("    s_mov_b64 exec, 1")
    for i in range(4):
        o.append(f"    global_store_dwordx4 v0, v[{2+4*i}:{5+4*i}], s[60:61] offset:{16*i}")
    o += ["L_end:", "    s_endpgm", '.section .rodata,"a"', ".p2align 6", f".amdhsa_kernel {NAME}_kernel",
          f"  .amdhsa_next_free_vgpr {vg}", "  .amdhsa_next_free_sgpr 96", "  .amdhsa_accum_offset 256",
          "  .amdhsa_group_segment_fixed_size 0", "  .amdhsa_kernarg_size 48", "  .amdhsa_user_sgpr_count 2",
          "  .amdhsa_user_sgpr_kernarg_segment_ptr 1", "  .amdhsa_system_sgpr_workgroup_id_x 1", ".end_amdhsa_kernel"]
    return "\n".join(o) + "\n"

def icache(st):
    o = ["    s_mov_b32 s41, 0", "    s_mov_b32 s36, 0x05040100", st(), "L_l:"]
    a = st(); b = st()
    o2 = []
    for i in range(2048):
        o2.append(f"    v_perm_b32 v{40+(i%32)}, v{80+(i%16)}, v{100+(i%16)}, s36")
    o += o2
    o += ["    s_cmp_eq_u32 s41, 0", "    s_cbranch_scc0 L_d", a, "    s_mov_b32 s41, 1", "    s_branch L_l", "L_d:", b]
    return o

def wload(kind, nx):
    def f(st):
        o = ["    v_and_b32 v20, 63, v0", "    v_and_b32 v21, 15, v0", "    v_lshrrev_b32 v22, 4, v20",
             "    v_lshlrev_b32 v1, 4, v20", "    v_mul_u32_u24 v24, 3072, v23", "    v_add_u32 v1, v1, v24",
             "    v_mul_u32_u24 v27, 192, v23", "    v_mul_u32_u24 v26, 12, v21", "    v_add_u32 v27, v27, v26",
             "    v_mul_u32_u24 v26, 6144, v22", "    v_add_u32 v10, v27, v26", "    v_add_u32 v11, 3072, v10",
             "    v_lshlrev_b32 v12, 4, v20", "    v_mul_u32_u24 v26, 73728, v23", "    v_add_u32 v12, v12, v26",
             "    s_mul_i32 s30, s2, 12288", "    s_mul_i32 s38, s28, 3072", st()]
        for i in range(nx):
            o += [f"    s_add_u32 m0, s38, {i*12288}", "    s_nop 0"]
            for ee in range(3):
                o.append(f"    buffer_load_dwordx4 v1, s[12:15], s30 offen offset:{1024*ee} lds")
            o.append(f"    s_add_u32 s30, s30, {12288*256}")
        o.append(st())
        if kind == "x3":
            for s in range(12):
                o.append(f"    s_mov_b32 s35, {24576*s}")
                for kk in range(8):
                    va = 10 if kk < 4 else 11
                    tb = 32 + 32 * (s % 7)
                    o.append(f"    buffer_load_dwordx3 v[{tb+4*kk}:{tb+4*kk+2}], v{va}, s[16:19], s35 offen offset:{768*(kk&3)}")
                if s in (0, 3, 5, 8): o.append(st())
        elif kind == "x4":
            for s in range(18):
                o.append(f"    s_mov_b32 s35, {4096*s}")
                for kk in range(4):
                    idx = 4 * s + kk
                    dst = f"a[{4*idx}:{4*idx+3}]" if idx < 64 else f"v[{160+4*(idx-64)}:{163+4*(idx-64)}]"
                    o.append(f"    buffer_load_dwordx4 {dst}, v12, s[16:19], s35 offen offset:{1024*kk}")
                if s in (0, 5, 8, 12): o.append(st())
        o.append(st())
        return o
    return f

if __name__ == "__main__":
    open("../var/m_icache.s", "w").write(wrap(icache))
    open("../var/m_w3_x0.s", "w").write(wrap(wload("x3", 0)))
    open("../var/m_w4_x0.s", "w").write(wrap(wload("x4", 0)))
    open("../var/m_w4_x2.s", "w").write(wrap(wload("x4", 2)))
    open("../var/m_w0_x8.s", "w").write(wrap(wload("none", 8)))
```

```python
from micro1 import NAME
def gen(nctr, stride, NT=16, pace=0, flags="sc0 sc1", ws=False):
    grid = 256
    o = [f"; @launch grid=({grid},1,1) block=(64,1,1) lds=0",
         '.amdgcn_target "amdgcn-amd-amdhsa--gfx950"', ".text", f".globl {NAME}_kernel", ".p2align 8",
         f".type {NAME}_kernel,@function", f"{NAME}_kernel:"]
    o += [f"    s_cmp_ge_u32 s2, {grid}", "    s_cbranch_scc1 L_end",
          "    s_load_dwordx4 s[4:7], s[0:1], 32",
          "    s_lshr_b32 s8, s2, 4", f"    s_and_b32 s8, s8, {nctr-1}", f"    s_mul_i32 s8, s8, {stride}", f"    s_add_u32 s8, s8, {(1<<20) if ws else 0}",
          "    v_mov_b32 v1, s8", "    v_mov_b32 v2, 1", "    s_mov_b64 exec, 1", "    s_mov_b32 s20, 0", "    s_mov_b32 s21, 0",
          "    s_waitcnt lgkmcnt(0)", "    s_memrealtime s[10:11]", "    s_waitcnt lgkmcnt(0)", "L_l:",
          "    s_memrealtime s[12:13]",
          f"    global_atomic_add v3, v1, v2, s[{6 if ws else 4}:{7 if ws else 5}] {flags}", "    s_waitcnt vmcnt(0)",
          "    s_memrealtime s[14:15]", "    s_waitcnt lgkmcnt(0)", "    s_sub_u32 s16, s14, s12", "    s_max_u32 s21, s21, s16"]
    if pace:
        o += ["L_p:", "    s_memrealtime s[14:15]", "    s_waitcnt lgkmcnt(0)", "    s_sub_u32 s16, s14, s12", f"    s_cmp_lt_u32 s16, {pace}", "    s_cbranch_scc1 L_p"]
    o += ["    s_add_u32 s20, s20, 1", f"    s_cmp_lt_u32 s20, {NT}", "    s_cbranch_scc1 L_l",
          "    s_memrealtime s[14:15]", "    s_waitcnt lgkmcnt(0)",
          "    s_lshl_b32 s22, s2, 6", "    v_mov_b32 v0, s22", "    v_mov_b32 v4, s10", "    v_mov_b32 v5, s14", "    v_mov_b32 v6, s21",
          "    global_store_dwordx2 v0, v[4:5], s[6:7]", "    global_store_dword v0, v6, s[6:7] offset:60"]
    o += ["L_end:", "    s_endpgm", '.section .rodata,"a"', ".p2align 6", f".amdhsa_kernel {NAME}_kernel",
          f"  .amdhsa_next_free_vgpr 8", "  .amdhsa_next_free_sgpr 32", "  .amdhsa_accum_offset 8",
          "  .amdhsa_group_segment_fixed_size 0", "  .amdhsa_kernarg_size 48", "  .amdhsa_user_sgpr_count 2",
          "  .amdhsa_user_sgpr_kernarg_segment_ptr 1", "  .amdhsa_system_sgpr_workgroup_id_x 1", ".end_amdhsa_kernel"]
    return "\n".join(o) + "\n"
if __name__ == "__main__":
    for (n, st) in ((4, 4352), (8, 4352), (16, 4352), (4, 256), (8, 256), (16, 256), (4, 65792), (16, 65792)):
        open(f"../var/tw_{n}_{st}.s", "w").write(gen(n, st, ws=True))
```
